```python
import torch

def _softmax(x, axis=-1):
    return torch.softmax(x, dim=axis)
def _gelu(x):
    return torch.nn.functional.gelu(x, approximate="tanh")
def _silu(x):
    return torch.nn.functional.silu(x)
def _sigmoid(x):
    return torch.sigmoid(x)
def _layernorm(x, axis=-1, eps=1e-5):
    m = x.mean(dim=axis, keepdim=True)
    v = x.var(dim=axis, keepdim=True, unbiased=False)
    return (x - m) / torch.sqrt(v + eps)
def _scatter_add(tgt, idx, src, axis=0):
    return tgt.clone().index_add_(axis, idx, src)
def _segment_sum(src, seg, n):
    out = torch.zeros((n,) + src.shape[1:], dtype=src.dtype)
    return out.index_add_(0, seg, src)
def _pad(x, pw):
    flat = tuple(v for pair in reversed(pw) for v in pair)
    return torch.nn.functional.pad(x, flat)

kernel_name = 'recurrent_scan__gqa_block_cached__glu_gated_bilinear__prompt'

def setup_inputs():

    _w = (lambda a: (lambda t: t.to(torch.bfloat16) if t.is_floating_point() else t)(torch.as_tensor(a)))
    def _A_setup():
        B, Sq, D = 1, 2048, 512
        Hq, Hkv, Sk, Dh = 32, 32, 2048, 128
        assert Hq % Hkv == 0, (Hq, Hkv)
        return {
            "x": _w((lambda *s: torch.randn(*s, dtype=torch.bfloat16) * 0.05)(B, Sq, D)),
            "k_cache": _w((lambda *s: torch.randn(*s, dtype=torch.bfloat16) * 1.6)(B, Hkv, Sk, Dh)),
            "v_cache": _w((lambda *s: torch.randn(*s, dtype=torch.bfloat16) * 1.6)(B, Hkv, Sk, Dh)),
            "wq": _w((lambda *s: torch.randn(*s, dtype=torch.bfloat16) * 1.6)(D, Hq * Dh) * (D ** -0.5)),
            "wo": _w((lambda *s: torch.randn(*s, dtype=torch.bfloat16) * 1.6)(Hq * Dh, D) * ((Hq * Dh) ** -0.5)),
        }
    _A_in = _A_setup()

    def _B_setup():
        B, S, D, F = 1, 2048, 512, 1376
        return {
            "x": _w((lambda *s: torch.randn(*s, dtype=torch.bfloat16) * 0.05)(B, S, D)),
            "w_gate": _w((lambda *s: torch.randn(*s, dtype=torch.bfloat16) * 0.2)(D, F) * (D ** -0.5)),
            "w_up": _w((lambda *s: torch.randn(*s, dtype=torch.bfloat16) * 0.2)(D, F) * (D ** -0.5)),
            "w_down": _w((lambda *s: torch.randn(*s, dtype=torch.bfloat16) * 0.2)(F, D) * (F ** -0.5)),
        }
    _B_in = _B_setup()

    return {
        "A_x": _A_in["x"],
        "A_k_cache": _A_in["k_cache"],
        "A_v_cache": _A_in["v_cache"],
        "A_wq": _A_in["wq"],
        "A_wo": _A_in["wo"],
        "B_x": _B_in["x"],
        "B_w_gate": _B_in["w_gate"],
        "B_w_up": _B_in["w_up"],
        "B_w_down": _B_in["w_down"],
    }

def reference(A_x, A_k_cache, A_v_cache, A_wq, A_wo, B_x, B_w_gate, B_w_up, B_w_down):
    def _A_ref(x, k_cache, v_cache, wq, wo):
        B, Sq, D = x.shape
        Hq, Dh = 32, 128
        Hkv = k_cache.shape[1]
        rep = Hq // Hkv
        q = (lambda x, *d: x.permute(*d))((x @ wq).reshape(B, Sq, Hq, Dh), 0, 2, 1, 3)
        k = (lambda x, n, axis: torch.repeat_interleave(x, n, dim=axis))(k_cache, rep, axis=1)
        v = (lambda x, n, axis: torch.repeat_interleave(x, n, dim=axis))(v_cache, rep, axis=1)
        scores = torch.einsum("bhqd,bhkd->bhqk", q, k) * (Dh ** -0.5)
        p = _softmax(scores, axis=-1)
        o = torch.einsum("bhqk,bhkd->bhqd", p, v)
        return (lambda x, *d: x.permute(*d))(o, 0, 2, 1, 3).reshape(B, Sq, Hq * Dh) @ wo

    def _B_ref(x, w_gate, w_up, w_down):
        g = torch.einsum("bsd,df->bsf", x, w_gate)
        u = torch.einsum("bsd,df->bsf", x, w_up)
        h = g * u
        return torch.einsum("bsf,fd->bsd", h, w_down)

    x = A_x
    xn = _layernorm(x, axis=-1)
    s = _A_ref(xn, A_k_cache, A_v_cache, A_wq, A_wo)
    g = _silu(_B_ref(xn, B_w_gate, B_w_up, B_w_down))
    return x + s * g
```

```python
import re


class Asm:
    def __init__(self):
        self.lines = []
        self.lg = []
        self.vm = []

    def e(self, s):
        self.lines.append("    " + s)

    def raw(self, s):
        self.lines.append(s)

    def label(self, s):
        self.lines.append(s + ":")

    def c(self, s):
        self.lines.append("    ; " + s)

    def ds(self, s, tag=None):
        self.e(s)
        self.lg.append(tag)

    def lg_need(self, tags):
        idx = -1
        for i, t in enumerate(self.lg):
            if t in tags:
                idx = i
        if idx < 0:
            return None
        return min(len(self.lg) - 1 - idx, 15)

    def wait_lg(self, tags):
        n = self.lg_need(tags)
        if n is None:
            return False
        self.e(f"s_waitcnt lgkmcnt({n})")
        self.lg = self.lg[len(self.lg) - n:] if n else []
        return True

    def wait_lg_all(self):
        self.e("s_waitcnt lgkmcnt(0)")
        self.lg = []

    def vmem(self, s, tag=None):
        self.e(s)
        self.vm.append(tag)

    def vm_need(self, tags):
        idx = -1
        for i, t in enumerate(self.vm):
            if t in tags:
                idx = i
        if idx < 0:
            return None
        return min(len(self.vm) - 1 - idx, 63)

    def wait_vm(self, tags):
        n = self.vm_need(tags)
        if n is None:
            return False
        self.e(f"s_waitcnt vmcnt({n})")
        self.vm = self.vm[len(self.vm) - n:] if n else []
        return True

    def wait_vm_all(self):
        self.e("s_waitcnt vmcnt(0)")
        self.vm = []

    def text(self):
        return "\n".join(self.lines) + "\n"


class Gap:
    def __init__(self, mfma, needs=()):
        self.mfma = mfma
        self.needs = tuple(needs)
        self.sh = []
        self.vec = []
        self.vfree = 2
        self.reserved_sh = False


class Sched:
    def __init__(self, gaps, vslots=2):
        self.gaps = gaps
        for g in gaps:
            g.vfree = vslots
        for i in range(len(gaps) - 1):
            if gaps[i + 1].needs:
                gaps[i].reserved_sh = True

    def vec(self, item, at, cost=1, latest=None):
        i = at
        while i < len(self.gaps) and self.gaps[i].vfree < cost:
            i += 1
        assert i < len(self.gaps), f"no slot for {item} from {at}"
        if latest is not None:
            assert i <= latest, f"{item} placed at {i} > latest {latest}"
        self.gaps[i].vec.append(item)
        self.gaps[i].vfree -= cost
        return i

    def sc(self, item, at, latest=None, force=False):
        i = at
        if not force:
            while i < len(self.gaps) and (self.gaps[i].sh or self.gaps[i].reserved_sh):
                i += 1
        assert i < len(self.gaps), f"no shadow slot for {item} from {at}"
        if latest is not None:
            assert i <= latest, f"{item} placed at {i} > latest {latest}"
        self.gaps[i].sh.append(item)
        return i

    def emit(self, a, next_needs=()):
        n = len(self.gaps)
        for i, g in enumerate(self.gaps):
            if i == 0 and g.needs:
                a.wait_lg(g.needs)
            a.e(g.mfma)
            nn = self.gaps[i + 1].needs if i + 1 < n else next_needs
            if nn:
                a.wait_lg(nn)
            for it in g.sh:
                emit_item(a, it)
            for it in g.vec:
                emit_item(a, it)


def emit_item(a, it):
    k = it[0]
    if k in ('v', 's'):
        a.e(it[1])
    elif k == 'ds':
        a.ds(it[1], it[2])
    elif k == 'vm':
        a.vmem(it[1], it[2])
    elif k == 'waitvm':
        a.wait_vm(it[1])
    elif k == 'waitvmn':
        a.e(f"s_waitcnt vmcnt({it[1]})")
        n = it[1]
        a.vm = a.vm[len(a.vm) - n:] if n else []
    elif k == 'waitlg':
        a.wait_lg(it[1])
    elif k == 'assert_lg_done':
        assert a.lg_need(it[1]) is None, f"LDS tags {it[1]} not complete"
    elif k == 'bar':
        a.e("s_barrier")
    elif k == 'c':
        a.c(it[1])
    else:
        raise ValueError(k)


def R(kind, base, n=1):
    if n == 1:
        return f"{kind}{base}"
    return f"{kind}[{base}:{base + n - 1}]"


_reg_re = re.compile(r"\b([vas])(\d+)\b|\b([vas])\[(\d+):(\d+)\]")


def regs_of(op):
    out = set()
    for m in _reg_re.finditer(op):
        if m.group(1):
            out.add((m.group(1), int(m.group(2))))
        else:
            for r in range(int(m.group(4)), int(m.group(5)) + 1):
                out.add((m.group(3), r))
    if re.search(r"\bvcc\b", op):
        out.add(('vcc', 0))
    if re.search(r"\bm0\b", op):
        out.add(('m0', 0))
    return out


TRANS = ("v_exp_f32", "v_log_f32", "v_rcp_f32", "v_rsq_f32", "v_sqrt_f32", "v_sin_f32", "v_cos_f32")


def parse(line):
    s = line.split(";")[0].strip()
    if not s or s.endswith(":") or s.startswith("."):
        return None
    parts = s.split(None, 1)
    op = parts[0]
    args = [x.strip() for x in parts[1].split(",")] if len(parts) > 1 else []
    return op, args


def classify(op, args):
    d = dict(kind='other', wr=set(), rd=set(), srcC=set(), passes=0, op=op, args=args)
    if op.startswith("v_mfma"):
        d['kind'] = 'mfma'
        d['wr'] = regs_of(args[0])
        d['rdAB'] = regs_of(args[1]) | regs_of(args[2])
        d['srcC'] = regs_of(args[3])
        d['rd'] = d['rdAB'] | d['srcC']
        d['passes'] = 4 if "16x16x32" in op else 8
    elif op.startswith("v_cmp"):
        d['kind'] = 'valu'
        d['wr'] = regs_of(args[0])
        for x in args[1:]:
            d['rd'] |= regs_of(x)
    elif op.startswith("v_permlane") and "swap" in op:
        d['kind'] = 'valu'
        d['perm'] = True
        d['wr'] = regs_of(args[0]) | regs_of(args[1])
        d['rd'] = set(d['wr'])
    elif op.startswith("v_"):
        d['kind'] = 'valu'
        d['wr'] = regs_of(args[0])
        rest = args[1:]
        if op in ("v_add_co_u32", "v_addc_co_u32", "v_sub_co_u32"):
            d['wr'] |= regs_of(args[1])
            rest = args[2:]
        for x in rest:
            d['rd'] |= regs_of(x)
        if op.startswith("v_fmac") or op.startswith("v_dot2c") or "dpp" in op:
            d['rd'] |= regs_of(args[0])
        if op in TRANS:
            d['trans'] = True
        if "dpp" in op:
            d['dpp'] = True
    elif op.startswith("ds_read") or op.startswith("ds_bpermute") or op.startswith("ds_swizzle"):
        d['kind'] = 'ds'
        d['wr'] = regs_of(args[0])
        for x in args[1:]:
            d['rd'] |= regs_of(x)
    elif op.startswith("ds_write"):
        d['kind'] = 'ds'
        for x in args:
            d['rd'] |= regs_of(x)
    elif op.startswith("buffer_load") or op.startswith("global_load"):
        d['kind'] = 'vmem'
        full = " ".join(args)
        if re.search(r"\blds\b", full) or "_lds_" in op:
            d['lds'] = True
            for x in args:
                d['rd'] |= regs_of(x)
            d['rd'].add(('m0', 0))
        else:
            d['wr'] = regs_of(args[0])
            for x in args[1:]:
                d['rd'] |= regs_of(x)
    elif op.startswith("buffer_store") or op.startswith("global_store") or "atomic" in op:
        d['kind'] = 'vmem'
        d['store'] = True
        for x in args:
            d['rd'] |= regs_of(x)
        if "dwordx4" in op or "dwordx3" in op:
            d['wide'] = regs_of(args[0]) if op.startswith("buffer") else regs_of(args[1])
    elif op.startswith("s_"):
        d['kind'] = 'salu'
        if op in ("s_nop",):
            d['nop'] = int(args[0], 0) + 1
        elif op.startswith("s_cmp") or op.startswith("s_cbranch") or op in ("s_branch", "s_barrier", "s_waitcnt", "s_endpgm", "s_sleep", "s_setprio", "s_setpc_b64"):
            for x in args:
                d['rd'] |= regs_of(x)
        else:
            if args:
                d['wr'] = regs_of(args[0])
            for x in args[1:]:
                d['rd'] |= regs_of(x)
    return d


def check_hazards(lines, window=24):
    ins = []
    for ln, line in enumerate(lines):
        p = parse(line)
        if p is None:
            continue
        d = classify(*p)
        d['line'] = ln
        d['text'] = line.strip()
        ins.append(d)
    probs = []
    for j, c in enumerate(ins):
        dist = 0
        for i in range(j - 1, max(-1, j - window), -1):
            p = ins[i]
            need = 0
            why = ""
            if p['kind'] == 'valu':
                vw = {r for r in p['wr'] if r[0] in 'va'}
                sw = {r for r in p['wr'] if r[0] in ('s', 'vcc')}
                if c['kind'] == 'mfma' and vw & c['rd']:
                    need, why = 2, "VALU->MFMA"
                if c['kind'] == 'valu':
                    if p.get('trans') and not c.get('trans') and vw & c['rd']:
                        need, why = max(need, 1), "trans->valu"
                    if c.get('perm') and vw & c['rd']:
                        need, why = max(need, 2), "valu->permlane"
                    if c.get('dpp') and vw & c['rd']:
                        need, why = max(need, 2), "valu->dpp"
                    if c['op'] in ("v_readfirstlane_b32", "v_readlane_b32") and vw & c['rd']:
                        need, why = max(need, 1), "valu->readlane"
                    if sw & c['rd']:
                        need, why = max(need, 2), "valu sgpr->valu"
                        if c['op'] in ("v_readlane_b32", "v_writelane_b32"):
                            need = max(need, 4)
                if p.get('trans') and c['kind'] in ('vmem', 'ds', 'mfma') and vw & c['rd']:
                    need, why = max(need, 1), "trans->mem"
                if c['kind'] == 'vmem' and sw & c['rd']:
                    need, why = max(need, 5), "valu sgpr->vmem"
            if p['kind'] == 'mfma':
                ps = p['passes']
                if c['kind'] == 'mfma':
                    if p['wr'] & c['rdAB']:
                        need, why = {4: 8, 8: 12}[ps], "mfma D->AB"
                    elif p['wr'] & c['srcC']:
                        if p['wr'] == c['srcC'] and ps == c['passes']:
                            need = 0
                        else:
                            need, why = {4: 6, 8: 10}[ps], "mfma D->C overlap"
                    elif p['wr'] & c['wr']:
                        need, why = {4: 6, 8: 10}[ps], "mfma WAW"
                elif c['kind'] in ('valu', 'vmem', 'ds'):
                    if p['wr'] & (c['rd'] | c['wr']):
                        need, why = {4: 8, 8: 12}[ps], "mfma D->valu/mem"
                    if c['kind'] == 'valu' and p['srcC'] & c['wr']:
                        need, why = max(need, {4: 3, 8: 7}[ps]), "mfma C WAR"
            if p['kind'] == 'salu' and ('m0', 0) in p['wr'] and c.get('lds'):
                need, why = max(need, 1), "m0->ldsdma"
            if p.get('wide') and c['kind'] in ('valu', 'mfma', 'ds', 'vmem') and p['wide'] & c['wr']:
                need, why = max(need, 2), "store data WAR"
            if need > dist:
                probs.append(f"line {c['line']}: [{why}] need {need} have {dist}: '{p['text']}' -> '{c['text']}'")
            dist += p.get('nop', 1)
    return probs
```

```python
import sys, os, struct
sys.path.insert(0, os.path.dirname(os.path.abspath(__file__)))
from asmlib import *

NAME = "recurrent_scan__gqa_block_cached__glu_gated_bilinear__prompt"

WS_XN = 0x0
WS_O = 0x400000
WS_H = 0x1800000
O_BYTES = 128 * 128 * 1024
H_RB = 43 * 1024
H_BYTES = 128 * H_RB

MF = "v_mfma_f32_16x16x32_bf16"


def f32bits(x):
    return struct.unpack("<I", struct.pack("<f", x))[0]


def srd(a, d, lo, hi, nbytes):
    a.e(f"s_mov_b32 s{d}, {lo}")
    a.e(f"s_mov_b32 s{d+1}, {hi}")
    a.e(f"s_mov_b32 s{d+2}, {nbytes}")
    a.e(f"s_mov_b32 s{d+3}, 0x00020000")


def srd_off(a, d, lo, hi, off, nbytes):
    a.e(f"s_add_u32 s{d}, {lo}, {off}")
    a.e(f"s_addc_u32 s{d+1}, {hi}, 0")
    a.e(f"s_mov_b32 s{d+2}, {nbytes}")
    a.e(f"s_mov_b32 s{d+3}, 0x00020000")


def allreduce_add(a, v, t):
    for m in ("quad_perm:[1,0,3,2]", "quad_perm:[2,3,0,1]", "row_half_mirror", "row_mirror"):
        a.e("s_nop 1")
        a.e(f"v_add_f32_dpp v{v}, v{v}, v{v} {m} row_mask:0xf bank_mask:0xf")
    for sw in ("v_permlane16_swap_b32", "v_permlane32_swap_b32"):
        a.e(f"v_mov_b32 v{t}, v{v}")
        a.e("s_nop 1")
        a.e(f"{sw} v{v}, v{t}")
        a.e(f"v_add_f32 v{v}, v{v}, v{t}")


def gen_ln():
    a = Asm()
    a.raw(".p2align 8")
    a.raw(".type ln_kernel,@function")
    a.label("ln_kernel")
    a.e("s_cmp_ge_u32 s2, 512")
    a.e("s_cbranch_scc1 L_ln_done")
    a.e("s_load_dwordx2 s[4:5], s[0:1], 0")
    a.e("s_load_dwordx2 s[6:7], s[0:1], 88")
    a.e("v_lshlrev_b32 v1, 4, v0")
    a.e("s_lshl_b32 s3, s2, 12")
    a.e("s_waitcnt lgkmcnt(0)")
    srd(a, 8, "s4", "s5", 0x200000)
    srd_off(a, 12, "s6", "s7", WS_XN, 0x200000)
    a.e("buffer_load_dwordx4 v[4:7], v1, s[8:11], s3 offen")
    a.e("s_waitcnt vmcnt(0)")
    for i in range(4):
        a.e(f"v_lshlrev_b32 v{8+2*i}, 16, v{4+i}")
        a.e(f"v_and_b32 v{9+2*i}, 0xffff0000, v{4+i}")
    a.e("v_add_f32 v16, v8, v9")
    for i in range(2, 8):
        a.e(f"v_add_f32 v16, v16, v{8+i}")
    allreduce_add(a, 16, 17)
    a.e(f"v_mul_f32 v16, {f32bits(1.0/512):#x}, v16")
    for i in range(8):
        a.e(f"v_sub_f32 v{8+i}, v{8+i}, v16")
    a.e("v_mul_f32 v18, v8, v8")
    for i in range(1, 8):
        a.e(f"v_fmac_f32 v18, v{8+i}, v{8+i}")
    allreduce_add(a, 18, 17)
    a.e(f"v_mov_b32 v19, {f32bits(1e-5):#x}")
    a.e(f"v_fmac_f32 v19, {f32bits(1.0/512):#x}, v18")
    a.e("v_rsq_f32 v19, v19")
    a.e("s_nop 0")
    for i in range(8):
        a.e(f"v_mul_f32 v{8+i}, v{8+i}, v19")
    for i in range(4):
        a.e(f"v_cvt_pk_bf16_f32 v{4+i}, v{8+2*i}, v{9+2*i}")
    a.e("buffer_store_dwordx4 v[4:7], v1, s[12:15], s3 offen")
    a.label("L_ln_done")
    a.e("s_endpgm")
    return a, dict(name="ln_kernel", vgpr=24, accum=24, sgpr=24, grid=512, block=256, lds=0)


S_X, S_WQ, S_G, S_U, S_K, S_V, S_O, S_H = 4, 8, 12, 16, 20, 24, 28, 32
sWAVE, sHEAD, sQB, sPAR = 36, 37, 38, 39
sW1K, sW2K, sW4K, sW8K = 40, 41, 42, 43
sXP = 44
sT0, sT1, sT2 = 48, 49, 50
sKOFF, sVOFF, sLOOP = 51, 52, 53
sRB = 54
sSCALE = 58
sPTR = 64

vLANE = 0
vT = 1
vOX = 10
vOWQ, vOGU, vOK, vOV = 12, 13, 14, 15
vAWQ = 16
vAGU = 20
vAX = 24
vAK = 26
vAV = 30
vST = 38
vONES = 40
vEX = 44
vCI = 48
vAWQ2, vAGU2 = 48, 52
vXF = 64
vQF = 64
vQACC = 128
vS = 128
vP = 192
vL = 224
aO = 0
aF = 128
aH = 192
aAF = 224
aKA, aKB = 224, 240
aVF = 128

XBUF = [0, 32768]
WBASE = 65536
WRING = 6
KBASE = 98304
VBASE = 0


def kpos(j):
    return ((j + 2) % 4) * 16384


def vpos(j):
    return (j % 4) * 16384


def k2_setup(a):
    a.e("s_cmp_ge_u32 s2, 256")
    a.e("s_cbranch_scc1 L_k2_done")
    a.e(f"s_load_dwordx16 s[{sPTR}:{sPTR+15}], s[0:1], 0")
    a.e(f"s_load_dwordx8 s[{sPTR+16}:{sPTR+23}], s[0:1], 64")
    a.e("v_lshrrev_b32 v1, 6, v0")
    a.e("v_and_b32 v0, 63, v0")
    a.e(f"v_readfirstlane_b32 s{sWAVE}, v1")
    a.e(f"s_and_b32 s{sT0}, s2, 7")
    a.e(f"s_lshr_b32 s{sT1}, s2, 3")
    a.e(f"s_and_b32 s{sQB}, s{sT1}, 7")
    a.e(f"s_lshr_b32 s{sT1}, s{sT1}, 3")
    a.e(f"s_lshl_b32 s{sT0}, s{sT0}, 2")
    a.e(f"s_add_u32 s{sHEAD}, s{sT0}, s{sT1}")
    a.e(f"s_and_b32 s{sPAR}, s{sHEAD}, 1")
    a.e(f"s_lshl_b32 s{sW1K}, s{sWAVE}, 10")
    a.e(f"s_lshl_b32 s{sW2K}, s{sWAVE}, 11")
    a.e(f"s_lshl_b32 s{sW4K}, s{sWAVE}, 12")
    a.e(f"s_lshl_b32 s{sW8K}, s{sWAVE}, 13")
    a.e(f"s_lshl_b32 s{sT0}, s{sQB}, 4")
    a.e(f"s_lshl_b32 s{sT1}, s{sWAVE}, 2")
    a.e(f"s_add_u32 s{sT0}, s{sT0}, s{sT1}")
    a.e(f"s_lshl_b32 s{sT1}, s{sPAR}, 1")
    for b in range(4):
        a.e(f"s_xor_b32 s{sT2}, s{sT1}, {b}")
        a.e(f"s_add_u32 s{sRB+b}, s{sT0}, s{sT2}")
        a.e(f"s_lshl_b32 s{sXP+b}, s{sRB+b}, 14")
    a.e(f"s_mov_b32 s{sSCALE}, {f32bits(1.4426950408889634 / 128 ** 0.5):#x}")
    a.e("v_lshrrev_b32 v1, 4, v0")
    a.e("v_and_b32 v2, 15, v0")
    a.e("v_bfe_u32 v3, v0, 2, 2")
    a.e("v_and_b32 v4, 3, v0")
    a.e("v_lshrrev_b32 v5, 3, v0")
    a.e("v_and_b32 v6, 7, v0")
    a.e("v_xor_b32 v7, v6, v1")
    a.e("v_lshlrev_b32 v7, 4, v7")
    a.e(f"v_lshl_add_u32 v{vOX}, v5, 10, v7")
    a.e(f"v_xor_b32 v{vOX+1}, 64, v{vOX}")
    a.e(f"v_add_u32 v{vOX+1}, 8192, v{vOX+1}")
    a.e("v_lshlrev_b32 v7, 2, v1")
    a.e("v_xor_b32 v7, v7, v2")
    a.e("v_lshlrev_b32 v7, 4, v7")
    a.e(f"v_lshl_add_u32 v{vOWQ}, v1, 13, v7")
    a.e(f"s_lshl_b32 s{sT0}, s{sWAVE}, 16")
    a.e(f"v_add_u32 v{vOWQ}, s{sT0}, v{vOWQ}")
    a.e("v_and_b32 v7, 1, v1")
    a.e(f"s_and_b32 s{sT0}, s{sWAVE}, 1")
    a.e(f"s_lshl_b32 s{sT0}, s{sT0}, 1")
    a.e(f"v_or_b32 v7, s{sT0}, v7")
    a.e("v_lshlrev_b32 v7, 1, v7")
    a.e("v_xor_b32 v7, v7, v6")
    a.e("v_lshlrev_b32 v7, 4, v7")
    a.e(f"s_lshl_b32 s{sT0}, s{sWAVE}, 3")
    a.e(f"v_add_u32 v8, s{sT0}, v5")
    a.e("v_mul_u32_u24 v8, 2752, v8")
    a.e(f"v_add_u32 v{vOGU}, v8, v7")
    a.e(f"s_lshl_b32 s{sT0}, s{sWAVE}, 2")
    a.e(f"v_or_b32 v7, s{sT0}, v1")
    a.e("v_xor_b32 v7, v7, v2")
    a.e("v_lshlrev_b32 v7, 4, v7")
    a.e(f"v_lshl_add_u32 v{vOK}, v1, 8, v7")
    a.e(f"v_add_u32 v{vOK}, s{sW4K}, v{vOK}")
    a.e(f"s_and_b32 s{sT0}, s{sWAVE}, 1")
    a.e(f"s_lshl_b32 s{sT0}, s{sT0}, 2")
    a.e(f"v_or_b32 v7, s{sT0}, v1")
    a.e("v_lshlrev_b32 v7, 1, v7")
    a.e("v_xor_b32 v7, v7, v2")
    a.e("v_lshlrev_b32 v7, 4, v7")
    a.e(f"v_lshl_add_u32 v{vOV}, v1, 8, v7")
    a.e(f"v_add_u32 v{vOV}, s{sW4K}, v{vOV}")
    a.e("s_waitcnt lgkmcnt(0)")
    P = lambda i: (f"s{sPTR+2*i}", f"s{sPTR+2*i+1}")
    srd_off(a, S_X, *P(11), WS_XN, 0x200000)
    a.e(f"s_lshl_b32 s{sT0}, s{sHEAD}, 8")
    a.e(f"s_sub_u32 s{sT1}, 0x400000, s{sT0}")
    srd_off(a, S_WQ, *P(3), f"s{sT0}", f"s{sT1}")
    a.e(f"s_lshr_b32 s{sT0}, s{sHEAD}, 1")
    a.e(f"s_mul_i32 s{sT0}, s{sT0}, 192")
    a.e(f"s_lshl_b32 s{sT1}, s{sPAR}, 6")
    a.e(f"s_add_u32 s{sT0}, s{sT0}, s{sT1}")
    a.e(f"s_sub_u32 s{sT1}, {512*2752}, s{sT0}")
    srd_off(a, S_G, *P(6), f"s{sT0}", f"s{sT1}")
    srd_off(a, S_U, *P(7), f"s{sT0}", f"s{sT1}")
    a.e(f"s_lshl_b32 s{sT0}, s{sHEAD}, 19")
    srd_off(a, S_K, *P(1), f"s{sT0}", 0x80000)
    srd_off(a, S_V, *P(2), f"s{sT0}", 0x80000)
    srd_off(a, S_O, *P(11), WS_O, O_BYTES)
    srd_off(a, S_H, *P(11), WS_H, H_BYTES)


def dma_w_items(k):
    slot = WBASE + (k % WRING) * 16384
    g = []
    for q in range(2):
        g.append(([('s', f"s_mov_b32 s{sT0}, {k*262144 + q*32768}"),
                   ('s', f"s_add_u32 m0, s{sW2K}, {slot + q*1024}")],
                  ('vm', f"buffer_load_dwordx4 v{vOWQ}, s[{S_WQ}:{S_WQ+3}], s{sT0} offen lds", ('W', k))))
    g.append(([('s', f"s_mov_b32 s{sT0}, {k*32*2752}"),
               ('s', f"s_add_u32 m0, s{sW1K}, {slot + 8192}")],
              ('vm', f"buffer_load_dwordx4 v{vOGU}, s[{S_G}:{S_G+3}], s{sT0} offen lds", ('W', k))))
    g.append(([('s', f"s_add_u32 m0, s{sW1K}, {slot + 12288}")],
              ('vm', f"buffer_load_dwordx4 v{vOGU}, s[{S_U}:{S_U+3}], s{sT0} offen lds", ('W', k))))
    return g


def dma_x_items(c):
    g = []
    for n in range(8):
        p, par = n // 2, n % 2
        sc = []
        if par == 0:
            sc.append(('s', f"s_add_u32 s{sT0}, s{sXP+p}, {c*128}"))
        sc.append(('s', f"s_add_u32 m0, s{sW8K}, {XBUF[c % 2] + n*1024}"))
        g.append((sc, ('vm', f"buffer_load_dwordx4 v{vOX+par}, s[{S_X}:{S_X+3}], s{sT0} offen lds", ('X', c))))
    return g


def dma_kv_items(which, j, soff=None, tag=None):
    if which == 'K':
        base, vo, s = KBASE + kpos(j), vOK, S_K
    else:
        base, vo, s = VBASE + vpos(j), vOV, S_V
    g = []
    for n in range(4):
        sc = []
        if n == 0:
            if soff is None:
                sc.append(('s', f"s_mov_b32 s{sT0}, {j*16384}"))
            sc.append(('s', f"s_add_u32 m0, s{sW4K}, {base}"))
        so = f"s{sT0}" if soff is None else f"s{soff}"
        g.append((sc, ('vm', f"buffer_load_dwordx4 v{vo}, s[{s}:{s+3}], {so} offen offset:{n*1024} lds", tag or (which, j))))
    return g


def emit_dma_plain(a, groups):
    for sc, vm in groups:
        for it in sc:
            emit_item(a, it)
        if sc:
            a.e("s_nop 0")
        emit_item(a, vm)


def place_dma(sch, groups, at, stride=1):
    pos = at
    for sc, vm in groups:
        for it in sc:
            pos = sch.sc(it, pos) + 1
        pos = sch.vec(vm, pos)
        pos += stride
    return pos


def k2_addr_setup(a):
    a.e("v_lshlrev_b32 v7, 3, v1")
    a.e("v_add_u32 v7, v7, v3")
    a.e("v_lshlrev_b32 v8, 8, v7")
    a.e("v_lshl_add_u32 v8, v4, 4, v8")
    a.e(f"v_add_u32 v8, {WBASE}, v8")
    for k in range(4):
        a.e(f"v_xor_b32 v9, {k}, v3")
        a.e(f"v_lshl_add_u32 v{vAWQ+k}, v9, 6, v8")
        a.e(f"v_add_u32 v{vAWQ2+k}, 49152, v{vAWQ+k}")
    a.e("v_lshlrev_b32 v8, 7, v7")
    a.e("v_lshl_add_u32 v8, v4, 3, v8")
    a.e(f"v_add_u32 v8, {WBASE}, v8")
    a.e("v_and_b32 v9, 1, v1")
    a.e("v_lshlrev_b32 v9, 1, v9")
    a.e("v_lshrrev_b32 v7, 1, v3")
    a.e("v_or_b32 v9, v9, v7")
    a.e(f"s_lshl_b32 s{sT0}, s{sPAR}, 1")
    a.e(f"v_xor_b32 v9, s{sT0}, v9")
    for k in range(4):
        a.e(f"v_xor_b32 v7, {k}, v9")
        a.e(f"v_lshl_add_u32 v{vAGU+k}, v7, 5, v8")
        a.e(f"v_add_u32 v{vAGU2+k}, 49152, v{vAGU+k}")
    a.e("v_lshrrev_b32 v7, 1, v2")
    a.e("v_xor_b32 v7, v7, v1")
    a.e("v_lshlrev_b32 v7, 4, v7")
    a.e(f"v_lshl_add_u32 v{vAX}, v2, 7, v7")
    a.e(f"v_add_u32 v{vAX}, s{sW8K}, v{vAX}")
    a.e(f"v_xor_b32 v{vAX+1}, 64, v{vAX}")
    a.e("v_lshlrev_b32 v7, 4, v3")
    a.e("v_add_u32 v7, v7, v4")
    a.e("v_lshlrev_b32 v7, 8, v7")
    a.e(f"v_add_u32 v7, {KBASE}, v7")
    a.e("v_xor_b32 v8, v1, v2")
    for k in range(4):
        a.e(f"v_xor_b32 v9, {4*k}, v8")
        a.e(f"v_lshl_add_u32 v{vAK+k}, v9, 4, v7")
    a.e("v_lshlrev_b32 v7, 4, v1")
    a.e("v_add_u32 v7, v7, v3")
    a.e("v_lshlrev_b32 v7, 8, v7")
    a.e("v_lshl_add_u32 v7, v4, 3, v7")
    if VBASE:
        a.e(f"v_add_u32 v7, {VBASE}, v7")
    a.e("v_and_b32 v8, 1, v1")
    a.e("v_lshlrev_b32 v8, 2, v8")
    a.e("v_or_b32 v8, v8, v3")
    for k in range(8):
        a.e(f"v_xor_b32 v9, {k}, v8")
        a.e(f"v_lshl_add_u32 v{vAV+k}, v9, 5, v7")
    a.e(f"v_lshlrev_b32 v{vST}, 4, v0")
    for k in range(4):
        a.e(f"v_mov_b32 v{vONES+k}, 0x3f803f80")


BLK_ORDER = [('Q', 0), ('Q', 1), ('Q', 2), ('H', 0), ('Q', 3), ('Q', 4), ('Q', 5), ('H', 1),
             ('Q', 6), ('Q', 7), ('F', 0), ('H', 2), ('F', 1), ('F', 2), ('F', 3), ('H', 3)]


def afrag_reads(k, bi):
    kind, i = BLK_ORDER[bi]
    n = k * 16 + bi
    dst = aAF + (n % 8) * 4
    slot = (k % WRING) * 16384
    hi = slot >= 49152
    if hi:
        slot -= 49152
    out = []
    for u in range(2):
        if kind == 'Q':
            ksd, ud = i // 2, i % 2
            ad = (vAWQ2 if hi else vAWQ) + ksd
            off = slot + u * 1024 + ud * 8
        else:
            lb = (i % 2) + (2 if kind == 'H' else 0)
            ad = (vAGU2 if hi else vAGU) + lb
            off = slot + 8192 + (4096 if i >= 2 else 0) + u * 512
        out.append(('ds', f"ds_read_b64_tr_b16 a[{dst+2*u}:{dst+2*u+1}], v{ad} offset:{off}", ('A', n)))
    return out


def xfrag_reg(c, ks, qb):
    return vXF + (c % 2) * 32 + (ks * 4 + qb) * 4


def xfrag_reads(c):
    out = []
    for ks in range(2):
        for qb in range(4):
            d = xfrag_reg(c, ks, qb)
            out.append(('ds', f"ds_read_b128 v[{d}:{d+3}], v{vAX+ks} offset:{XBUF[c % 2] + qb*2048}", ('XF', c, ks)))
    return out


def acc_reg(kind, i, qb):
    if kind == 'Q':
        return 'v', vQACC + (i * 4 + qb) * 4
    if kind == 'F':
        return 'a', aF + (i * 4 + qb) * 4
    return 'a', aH + (i * 2 + qb) * 4


def k2_gemm(a):
    a.c("---- initial DMA")
    emit_dma_plain(a, dma_w_items(0))
    emit_dma_plain(a, dma_x_items(0))
    emit_dma_plain(a, dma_w_items(1))
    emit_dma_plain(a, dma_x_items(1))
    for k in range(2, WRING):
        emit_dma_plain(a, dma_w_items(k))
    k2_addr_setup(a)
    for i in range(128):
        a.e(f"v_accvgpr_write_b32 a{aO+i}, 0")
    a.wait_vm([('W', 0), ('X', 0)])
    a.e("s_barrier")
    for it in xfrag_reads(0):
        emit_item(a, it)
    for bi in range(4):
        for it in afrag_reads(0, bi):
            emit_item(a, it)
    gaps = []
    blk_start = {}
    for k in range(16):
        c, ks = k // 2, k % 2
        for bi, (kind, i) in enumerate(BLK_ORDER):
            n = k * 16 + bi
            blk_start[(k, bi)] = len(gaps)
            af = aAF + (n % 8) * 4
            for qb in range(4 if kind != 'H' else 2):
                t, r = acc_reg(kind, i, qb)
                xf = xfrag_reg(c, ks, qb)
                cs = "0" if k == 0 else f"{t}[{r}:{r+3}]"
                needs = []
                if qb == 0:
                    needs.append(('A', n))
                    if bi == 0:
                        needs.append(('XF', c, ks))
                gaps.append(Gap(f"{MF} {t}[{r}:{r+3}], a[{af}:{af+3}], v[{xf}:{xf+3}], {cs}", needs))
    sch = Sched(gaps)
    for k in range(16):
        c = k // 2
        if k < 15:
            p = sch.sc(('waitvm', [('W', k + 1)]), blk_start[(k, 10)])
            p = sch.sc(('bar',), p + 1, latest=blk_start[(k, 12)] - 1)
        for bi in range(16):
            kk, bb = (k, bi + 4) if bi + 4 < 16 else (k + 1, bi + 4 - 16)
            if kk > 15:
                continue
            for it in afrag_reads(kk, bb):
                sch.vec(it, blk_start[(k, bi)])
        if k % 2 == 1 and c + 1 < 8:
            p = sch.sc(('waitvm', [('X', c + 1)]), blk_start[(k, 1)])
            pos = p + 1
            for it in xfrag_reads(c + 1):
                pos = sch.vec(it, pos) + 2
    pos = 0
    for k in range(16):
        c = k // 2
        if k % 2 == 0 and c + 2 < 8:
            pos = max(pos, blk_start[(k, 2)])
            sch.sc(('assert_lg_done', [('XF', c, 0), ('XF', c, 1)]), pos, force=True)
            pos = place_dma(sch, dma_x_items(c + 2), pos)
        pos = max(pos, blk_start[(k, 12)])
        kk = k - 1 + WRING
        if k >= 1 and kk < 16:
            pos = place_dma(sch, dma_w_items(kk), pos)
        if k == 11:
            pos = place_dma(sch, dma_kv_items('K', 0), pos)
        if k == 12:
            pos = place_dma(sch, dma_kv_items('K', 1), pos)
            pos = place_dma(sch, dma_kv_items('V', 0), pos)
        if k == 13:
            pos = place_dma(sch, dma_kv_items('V', 1), pos)
    sch.emit(a)


def k2_convert(a):
    a.c("---- all waves done reading W: K(2), K(3)")
    a.wait_vm([('K', 0), ('K', 1), ('V', 0)])
    a.e("s_barrier")
    emit_dma_plain(a, dma_kv_items('K', 2))
    emit_dma_plain(a, dma_kv_items('K', 3)[:2])
    a.c("---- Q conversion")
    a.e("s_nop 7")
    for qb in range(4):
        for ksd in range(4):
            for ud in range(2):
                _, r = acc_reg('Q', ksd * 2 + ud, qb)
                d = vQF + (qb * 4 + ksd) * 4 + ud * 2
                for x in range(4):
                    a.e(f"v_mul_f32 v{r+x}, s{sSCALE}, v{r+x}")
                a.e(f"v_cvt_pk_bf16_f32 v{d}, v{r}, v{r+1}")
                a.e(f"v_cvt_pk_bf16_f32 v{d+1}, v{r+2}, v{r+3}")
    a.c("---- h = g*u -> ws")
    a.e(f"s_lshr_b32 s{sT0}, s{sHEAD}, 1")
    a.e(f"s_mul_i32 s{sT0}, s{sT0}, 3")
    a.e(f"s_lshl_b32 s{sT1}, s{sPAR}, 1")
    a.e(f"s_add_u32 s{sT1}, s{sT1}, s{sT0}")
    a.e(f"s_add_u32 s{sT0}, s{sT0}, 1")
    for s in (sT0, sT1):
        a.e(f"s_cmp_lt_u32 s{s}, 43")
        a.e(f"s_cselect_b32 s{s}, s{s}, 0x100000")
        a.e(f"s_lshl_b32 s{s}, s{s}, 10")
    tb = vQACC
    n = 0
    for kind, nq, sk in (('F', 4, sT1), ('H', 2, sT0)):
        for qb in range(nq):
            base = tb + (n % 4) * 24
            n += 1
            for blk in range(2):
                _, rg = acc_reg(kind, blk, qb)
                _, ru = acc_reg(kind, blk + 2, qb)
                for x in range(4):
                    a.e(f"v_accvgpr_read_b32 v{base+blk*4+x}, a{rg+x}")
                    a.e(f"v_accvgpr_read_b32 v{base+8+blk*4+x}, a{ru+x}")
            for x in range(8):
                a.e(f"v_mul_f32 v{base+x}, v{base+x}, v{base+8+x}")
            for x in range(4):
                a.e(f"v_cvt_pk_bf16_f32 v{base+16+x}, v{base+2*x}, v{base+2*x+1}")
            a.e(f"s_mul_i32 s{sT2}, s{sRB+qb}, {H_RB}")
            a.e(f"s_add_u32 s{sT2}, s{sT2}, s{sk}")
            a.vmem(f"buffer_store_dwordx4 v[{base+16}:{base+19}], v{vST}, s[{S_H}:{S_H+3}], s{sT2} offen", ('H',))


def kfrag_read(sub, kbl, ks):
    j = sub // 2
    kb = 2 * (sub % 2) + kbl
    d = (aKA if kbl == 0 else aKB) + ks * 4
    return ('ds', f"ds_read_b128 a[{d}:{d+3}], v{vAK+ks} offset:{kpos(j) + kb*1024}", ('KF', sub % 8, kbl, ks))


def vfrag_reads(sub, db):
    j = sub // 2
    ks = sub % 2
    d = aVF + (db % 4) * 4
    return [('ds', f"ds_read_b64_tr_b16 a[{d+2*u}:{d+2*u+1}], v{vAV+db} offset:{vpos(j) + (2*ks+u)*1024}", ('VF', sub % 8, db))
            for u in range(2)]


def sreg(sset, kbl, qb):
    return vS + sset * 32 + (kbl * 4 + qb) * 4


def preg(pset, qb):
    return vP + pset * 16 + qb * 4


def phase(a, t, qk=True, sm=True, pv=True, nqk=True, npv=True, bar=None, dmas=(), extra_sc=(), vslots=2, cinit=True):
    gaps = []
    gstart = {}
    for G in range(17):
        gstart[G] = len(gaps)
        if G == 16:
            if pv:
                for qb in range(4):
                    p = preg((t - 1) % 2, qb)
                    l = vL + qb * 4
                    gaps.append(Gap(f"{MF} v[{l}:{l+3}], v[{vONES}:{vONES+3}], v[{p}:{p+3}], v[{l}:{l+3}]"))
        elif G % 2 == 0:
            if qk:
                kbl, qb = G // 8, (G // 2) % 4
                s = sreg((t + 1) % 2, kbl, qb)
                for ks in range(4):
                    kf = (aKA if kbl == 0 else aKB) + ks * 4
                    q = vQF + (qb * 4 + ks) * 4
                    if ks == 0:
                        cs = f"v[{vCI+qb*4}:{vCI+qb*4+3}]" if cinit else "0"
                    else:
                        cs = f"v[{s}:{s+3}]"
                    needs = [('KF', (t + 1) % 8, kbl, x) for x in range(4)] if (qb == 0 and ks == 0) else []
                    gaps.append(Gap(f"{MF} v[{s}:{s+3}], a[{kf}:{kf+3}], v[{q}:{q+3}], {cs}", needs))
        else:
            if pv:
                db = G // 2
                vf = aVF + (db % 4) * 4
                for qb in range(4):
                    o = aO + (db * 4 + qb) * 4
                    p = preg((t - 1) % 2, qb)
                    needs = [('VF', (t - 1) % 8, db)] if qb == 0 else []
                    gaps.append(Gap(f"{MF} a[{o}:{o+3}], a[{vf}:{vf+3}], v[{p}:{p+3}], a[{o}:{o+3}]", needs))
    gstart[17] = len(gaps)
    sch = Sched(gaps, vslots)
    full = qk and pv
    n = len(gaps)

    def gp(G, k):
        if full:
            return gstart[G] + k
        return min(gstart[G] + (k if gstart[G + 1] > gstart[G] else 0), n - 1)

    lastcvt = {}
    if sm:
        for G in range(16):
            blk = G // 2
            kbl, qb = blk // 4, blk % 4
            s = sreg(t % 2, kbl, qb) + 2 * (G % 2)
            e = vEX + 2 * (G % 2)
            if full:
                p0, p1, p2 = gp(G, 0), gp(G, 1), gp(G, 3)
            else:
                p0 = (G * n) // 17
                p1 = p0
                p2 = p0
            p0 = sch.vec(('v', f"v_exp_f32 v{e}, v{s}"), max(p0, lastcvt.get(e, 0)), cost=2)
            p1 = sch.vec(('v', f"v_exp_f32 v{e+1}, v{s+1}"), max(p1, p0), cost=2)
            d = preg(t % 2, qb) + kbl * 2 + (G % 2)
            lastcvt[e] = sch.vec(('v', f"v_cvt_pk_bf16_f32 v{d}, v{e}, v{e+1}"), max(p2, p1 + 1))
    if bar is not None:
        p = sch.sc(bar, gp(8, 0))
        p = sch.sc(('bar',), p + 1, latest=gp(9, 0) - 1 if full else None)
        barpos = p + 1
    else:
        barpos = 0
    if qk:
        for ks in range(4):
            sch.vec(kfrag_read(t + 1, 1, ks), gp(1 + 2 * (ks // 2), 2))
    if nqk:
        for ks in range(4):
            sch.vec(kfrag_read(t + 2, 0, ks), max(barpos, gp(9 + 2 * (ks // 2), 2)))
    if pv:
        for db in range(6):
            for it in vfrag_reads(t - 1, db + 2):
                sch.vec(it, gp(2 * db, 2))
    if npv:
        for db in range(2):
            for it in vfrag_reads(t, db):
                sch.vec(it, max(barpos, gp(12 + 2 * db, 2)))
    for gi, (sc, vm) in dmas:
        G = (5, 7, 13, 15)[gi]
        pos = gp(G, 0)
        for it in sc:
            pos = sch.sc(it, pos) + 1
        sch.vec(vm, max(pos, gp(G, 2)), latest=gp(G, 3))
    for G, it in extra_sc:
        sch.sc(it, gp(G, 0))
    nn = [('KF', (t + 2) % 8, 0, x) for x in range(4)] if nqk else ([('VF', t % 8, 0)] if npv else [])
    sch.emit(a, nn)


def iteration(a, j, last=False):
    tA, tB = 2 * j + 1, 2 * j + 2
    a.c(f"==== iteration j%4={j%4}")
    if last:
        phase(a, tA, qk=False, nqk=False, vslots=3)
        phase(a, tB, qk=False, sm=False, nqk=False, npv=False)
        return
    kprev = dma_kv_items('K', j + 3, soff=sKOFF, tag='KV')
    vprev = dma_kv_items('V', j + 2, soff=sVOFF, tag='KV')
    knext = dma_kv_items('K', j + 4, soff=sKOFF, tag='KV')
    phase(a, tA, dmas=[(0, kprev[2]), (1, kprev[3]), (2, vprev[0]), (3, vprev[1])],
          extra_sc=[(10, ('s', f"s_add_u32 s{sKOFF}, s{sKOFF}, 16384"))])
    phase(a, tB, nqk=(j < 30), bar=('waitvmn', 8),
          dmas=[(0, vprev[2]), (1, vprev[3]), (2, knext[0]), (3, knext[1])],
          extra_sc=[(10, ('s', f"s_add_u32 s{sVOFF}, s{sVOFF}, 16384"))])


def k2_attention(a):
    a.c("---- attention prologue: QK(0)")
    for kbl in range(2):
        for ks in range(4):
            emit_item(a, kfrag_read(0, kbl, ks))
    for i in range(16):
        a.e(f"v_mov_b32 v{vL+i}, 0")
    gaps = []
    for kbl in range(2):
        for qb in range(4):
            s = sreg(0, kbl, qb)
            for ks in range(4):
                kf = (aKA if kbl == 0 else aKB) + ks * 4
                q = vQF + (qb * 4 + ks) * 4
                cs = "0" if ks == 0 else f"v[{s}:{s+3}]"
                gaps.append(Gap(f"{MF} v[{s}:{s+3}], a[{kf}:{kf+3}], v[{q}:{q+3}], {cs}",
                                [('KF', 0, kbl, ks)] if qb == 0 else []))
    sch = Sched(gaps)
    for ks in range(4):
        sch.vec(kfrag_read(1, 0, ks), 16 + ks)
    sch.emit(a)
    a.e("s_nop 7")
    a.c("---- first sub-tile row max")
    for qb in range(4):
        s0, s1 = sreg(0, 0, qb), sreg(0, 1, qb)
        m = vT + qb
        a.e(f"v_max3_f32 v{m}, v{s0}, v{s0+1}, v{s0+2}")
        a.e(f"v_max3_f32 v{m}, v{m}, v{s0+3}, v{s1}")
        a.e(f"v_max3_f32 v{m}, v{m}, v{s1+1}, v{s1+2}")
        a.e(f"v_max_f32 v{m}, v{m}, v{s1+3}")
    for sw in ("v_permlane16_swap_b32", "v_permlane32_swap_b32"):
        for qb in range(4):
            a.e(f"v_mov_b32 v{vT+4+qb}, v{vT+qb}")
        a.e("s_nop 0")
        for qb in range(4):
            a.e(f"{sw} v{vT+qb}, v{vT+4+qb}")
        for qb in range(4):
            a.e(f"v_max_f32 v{vT+qb}, v{vT+qb}, v{vT+4+qb}")
    for qb in range(4):
        for x in range(4):
            a.e(f"v_sub_f32 v{vCI+qb*4+x}, 0, v{vT+qb}")
    for kbl in range(2):
        for qb in range(4):
            s = sreg(0, kbl, qb)
            for x in range(4):
                a.e(f"v_sub_f32 v{s+x}, v{s+x}, v{vT+qb}")
    phase(a, 0, pv=False, vslots=4)


def k2_epilogue(a):
    a.c("---- epilogue")
    a.e("s_nop 7")
    for qb in range(4):
        a.e(f"v_rcp_f32 v{vT+qb}, v{vL+qb*4}")
    a.e(f"s_lshl_b32 s{sT1}, s{sHEAD}, 12")
    n = 0
    for qb in range(4):
        a.e(f"s_lshl_b32 s{sT0}, s{sRB+qb}, 17")
        a.e(f"s_add_u32 s{sT0}, s{sT0}, s{sT1}")
        for i in range(4):
            base = vS + (n % 6) * 12
            n += 1
            for h in range(2):
                o = aO + ((2 * i + h) * 4 + qb) * 4
                for x in range(4):
                    a.e(f"v_accvgpr_read_b32 v{base+h*4+x}, a{o+x}")
            for x in range(8):
                a.e(f"v_mul_f32 v{base+x}, v{base+x}, v{vT+qb}")
            for x in range(4):
                a.e(f"v_cvt_pk_bf16_f32 v{base+8+x}, v{base+2*x}, v{base+2*x+1}")
            a.vmem(f"buffer_store_dwordx4 v[{base+8}:{base+11}], v{vST}, s[{S_O}:{S_O+3}], s{sT0} offen offset:{i*1024}", ('O',))


def gen_k2():
    a = Asm()
    a.raw(".p2align 8")
    a.raw(".type attn_kernel,@function")
    a.label("attn_kernel")
    k2_setup(a)
    k2_gemm(a)
    k2_convert(a)
    k2_attention(a)
    a.e(f"s_mov_b32 s{sKOFF}, {3*16384}")
    a.e(f"s_mov_b32 s{sVOFF}, {2*16384}")
    a.e(f"s_add_u32 m0, s{sW4K}, {KBASE + kpos(3)}")
    a.e(f"s_mov_b32 s{sLOOP}, 7")
    a.wait_lg_all()
    tmp = Asm()
    for j in range(4):
        iteration(tmp, j)
    lg_entry = list(tmp.lg)
    a.lg = list(lg_entry)
    a.raw(".p2align 3")
    a.label("L_k2_loop")
    loop_start = len(a.lines)
    for j in range(4):
        iteration(a, j)
    a.e(f"s_sub_u32 s{sLOOP}, s{sLOOP}, 1")
    a.e(f"s_cmp_lg_u32 s{sLOOP}, 0")
    a.e("s_cbranch_scc1 L_k2_loop")
    loop_end = len(a.lines)
    assert a.lg == lg_entry, (a.lg, lg_entry)
    for j in range(28, 31):
        iteration(a, j)
    iteration(a, 31, last=True)
    k2_epilogue(a)
    a.wait_vm_all()
    a.label("L_k2_done")
    a.e("s_endpgm")
    chk = a.lines[:loop_end] + a.lines[loop_start:loop_end] + a.lines[loop_end:]
    for p in check_hazards(chk):
        print("HAZARD k2:", p)
    return a, dict(name="attn_kernel", vgpr=512, accum=256, sgpr=96, grid=256, block=256, lds=163840)


def gen_k3():
    a = Asm()
    D = 8
    S_OI, S_HI, S_WO, S_WD, S_XX, S_OUT = 4, 8, 12, 16, 20, 24
    sW, sMT, sNT = 28, 29, 30
    sA, sB, sC = 31, 32, 33
    sOB, sHB, sWOB, sWDB, sLB = 34, 35, 36, 37, 38
    sYK = 39
    sP = 64
    vOW, vAW, vL16 = 1, 4, 2
    vBF = 16
    vAF = 144
    aS, aY = 0, 64
    a.raw(".p2align 8")
    a.raw(".type out_kernel,@function")
    a.label("out_kernel")
    a.e("s_cmp_ge_u32 s2, 256")
    a.e("s_cbranch_scc1 L_k3_done")
    a.e(f"s_load_dwordx16 s[{sP}:{sP+15}], s[0:1], 0")
    a.e(f"s_load_dwordx8 s[{sP+16}:{sP+23}], s[0:1], 64")
    a.e("v_lshrrev_b32 v1, 6, v0")
    a.e("v_and_b32 v0, 63, v0")
    a.e(f"v_readfirstlane_b32 s{sW}, v1")
    a.e(f"s_and_b32 s{sA}, s2, 7")
    a.e(f"s_lshr_b32 s{sB}, s2, 3")
    a.e(f"s_and_b32 s{sNT}, s{sB}, 7")
    a.e(f"s_lshr_b32 s{sB}, s{sB}, 3")
    a.e(f"s_lshl_b32 s{sA}, s{sA}, 2")
    a.e(f"s_add_u32 s{sMT}, s{sA}, s{sB}")
    a.e("v_lshrrev_b32 v8, 4, v0")
    a.e("v_bfe_u32 v9, v0, 2, 2")
    a.e("v_and_b32 v10, 3, v0")
    a.e("v_lshrrev_b32 v11, 3, v0")
    a.e("v_and_b32 v12, 7, v0")
    a.e(f"v_lshlrev_b32 v{vL16}, 4, v0")
    a.e("v_lshlrev_b32 v13, 1, v8")
    a.e("v_xor_b32 v13, v13, v12")
    a.e("v_lshlrev_b32 v13, 4, v13")
    a.e(f"v_lshl_add_u32 v{vOW}, v11, 10, v13")
    a.e("v_lshlrev_b32 v13, 2, v8")
    a.e("v_add_u32 v13, v13, v9")
    a.e("v_bfe_u32 v14, v13, 1, 2")
    a.e("v_lshlrev_b32 v13, 7, v13")
    a.e("v_lshl_add_u32 v13, v10, 3, v13")
    a.e(f"s_lshl_b32 s{sLB}, s{sW}, 15")
    a.e(f"v_add_u32 v13, s{sLB}, v13")
    for nb in range(4):
        a.e(f"v_xor_b32 v15, {nb}, v14")
        a.e(f"v_lshl_add_u32 v{vAW+nb}, v15, 5, v13")
    a.e("s_waitcnt lgkmcnt(0)")
    P = lambda i: (f"s{sP+2*i}", f"s{sP+2*i+1}")
    srd_off(a, S_OI, *P(11), WS_O, O_BYTES)
    srd_off(a, S_HI, *P(11), WS_H, H_BYTES)
    a.e(f"s_lshl_b32 s{sA}, s{sNT}, 7")
    a.e(f"s_sub_u32 s{sB}, {4096*1024}, s{sA}")
    srd_off(a, S_WO, *P(4), f"s{sA}", f"s{sB}")
    a.e(f"s_sub_u32 s{sB}, {1376*1024}, s{sA}")
    srd_off(a, S_WD, *P(8), f"s{sA}", f"s{sB}")
    srd(a, S_XX, *P(0), 0x200000)
    srd(a, S_OUT, *P(9), 0x200000)
    a.e(f"s_lshl_b32 s{sOB}, s{sMT}, 19")
    a.e(f"s_add_u32 s{sOB}, s{sOB}, s{sLB}")
    a.e(f"s_lshl_b32 s{sWOB}, s{sW}, 20")
    a.e(f"s_mul_i32 s{sYK}, s{sW}, 11")
    a.e(f"s_mul_i32 s{sHB}, s{sMT}, {4*H_RB}")
    a.e(f"s_lshl_b32 s{sA}, s{sYK}, 10")
    a.e(f"s_add_u32 s{sHB}, s{sHB}, s{sA}")
    a.e(f"s_lshl_b32 s{sWDB}, s{sYK}, 15")
    NS = 43

    def issue(st):
        slot = st % D
        if st < 32:
            sw, wb, sb, bb, rbs, k = S_WO, sWOB, S_OI, sOB, 131072, st
        else:
            sw, wb, sb, bb, rbs, k = S_WD, sWDB, S_HI, sHB, H_RB, st - 32
        for n in range(4):
            a.e(f"s_add_u32 s{sA}, s{wb}, {k*32768 + n*8192}")
            a.e(f"s_add_u32 m0, s{sLB}, {slot*4096 + n*1024}")
            a.e("s_nop 0")
            a.vmem(f"buffer_load_dwordx4 v{vOW}, s[{sw}:{sw+3}], s{sA} offen lds", ('W', st))
        for qb in range(4):
            a.e(f"s_add_u32 s{sA}, s{bb}, {k*1024 + qb*rbs}")
            if st == NS - 1:
                a.e(f"s_cmp_eq_u32 s{sW}, 3")
                a.e(f"s_cselect_b32 s{sA}, 0x40000000, s{sA}")
            d = vBF + slot * 16 + qb * 4
            a.vmem(f"buffer_load_dwordx4 v[{d}:{d+3}], v{vL16}, s[{sb}:{sb+3}], s{sA} offen", ('B', st))

    def areads(st):
        slot = st % D
        for nb in range(4):
            d = vAF + (st % 2) * 16 + nb * 4
            for u in range(2):
                a.ds(f"ds_read_b64_tr_b16 v[{d+2*u}:{d+2*u+1}], v{vAW+nb} offset:{slot*4096 + u*2048}", ('A', st))

    for st in range(D - 1):
        issue(st)
    a.wait_vm([('W', 0)])
    areads(0)
    for st in range(NS):
        if st + D - 1 < NS:
            issue(st + D - 1)
        if st + 1 < NS:
            a.wait_vm([('W', st + 1), ('B', st)])
            areads(st + 1)
        else:
            a.wait_vm([('B', st)])
        a.wait_lg([('A', st)])
        acc = aS if st < 32 else aY
        first = st == 0 or st == 32
        for nb in range(4):
            af = vAF + (st % 2) * 16 + nb * 4
            for qb in range(4):
                bf = vBF + (st % D) * 16 + qb * 4
                o = acc + (nb * 4 + qb) * 4
                cs = "0" if first else f"a[{o}:{o+3}]"
                a.e(f"{MF} a[{o}:{o+3}], v[{af}:{af+3}], v[{bf}:{bf+3}], {cs}")
    a.e("s_nop 7")
    a.e(f"v_add_u32 v3, s{sLB}, v{vL16}")
    for qb in range(4):
        for part in range(8):
            o = (aS if part < 4 else aY) + ((part % 4) * 4 + qb) * 4
            a.ds(f"ds_write_b128 v3, a[{o}:{o+3}] offset:{qb*8192 + part*1024}")
    a.e("v_and_b32 v13, 15, v0")
    a.e("v_lshlrev_b32 v13, 10, v13")
    a.e("v_lshl_add_u32 v13, v8, 3, v13")
    a.e(f"s_lshl_b32 s{sA}, s{sMT}, 16")
    a.e(f"s_lshl_b32 s{sB}, s{sW}, 14")
    a.e(f"s_add_u32 s{sA}, s{sA}, s{sB}")
    a.e(f"s_lshl_b32 s{sB}, s{sNT}, 7")
    a.e(f"s_add_u32 s{sA}, s{sA}, s{sB}")
    for nb in range(4):
        a.vmem(f"buffer_load_dwordx2 v[{vAF+2*nb}:{vAF+2*nb+1}], v13, s[{S_XX}:{S_XX+3}], s{sA} offen offset:{nb*32}", ('X',))
    a.wait_lg_all()
    a.e("s_barrier")
    a.e(f"s_lshl_b32 s{sB}, s{sW}, 13")
    a.e(f"v_add_u32 v3, s{sB}, v{vL16}")
    a.e("v_add_u32 v14, 0x10000, v3")
    for src in range(4):
        for part in range(8):
            d = vBF + (src * 8 + part) * 4
            ad = 3 if src < 2 else 14
            a.ds(f"ds_read_b128 v[{d}:{d+3}], v{ad} offset:{(src % 2)*32768 + part*1024}")
    a.wait_lg_all()
    for i in range(32):
        a.e(f"v_add_f32 v{vBF+i}, v{vBF+i}, v{vBF+32+i}")
        a.e(f"v_add_f32 v{vBF+64+i}, v{vBF+64+i}, v{vBF+96+i}")
    for i in range(32):
        a.e(f"v_add_f32 v{vBF+i}, v{vBF+i}, v{vBF+64+i}")
    T = vBF + 32
    for i in range(16):
        a.e(f"v_mul_f32 v{T+i}, {f32bits(-1.4426950408889634):#x}, v{vBF+16+i}")
    for i in range(16):
        a.e(f"v_exp_f32 v{T+i}, v{T+i}")
    for i in range(16):
        a.e(f"v_add_f32 v{T+i}, 1.0, v{T+i}")
    for i in range(16):
        a.e(f"v_rcp_f32 v{T+i}, v{T+i}")
    for i in range(16):
        a.e(f"v_mul_f32 v{T+i}, v{T+i}, v{vBF+16+i}")
    a.wait_vm_all()
    X = vBF + 48
    for nb in range(4):
        for h in range(2):
            a.e(f"v_lshlrev_b32 v{X+nb*4+2*h}, 16, v{vAF+2*nb+h}")
            a.e(f"v_and_b32 v{X+nb*4+2*h+1}, 0xffff0000, v{vAF+2*nb+h}")
    for i in range(16):
        a.e(f"v_fmac_f32 v{X+i}, v{vBF+i}, v{T+i}")
    for nb in range(4):
        for h in range(2):
            a.e(f"v_cvt_pk_bf16_f32 v{vAF+8+2*nb+h}, v{X+nb*4+2*h}, v{X+nb*4+2*h+1}")
        a.vmem(f"buffer_store_dwordx2 v[{vAF+8+2*nb}:{vAF+8+2*nb+1}], v13, s[{S_OUT}:{S_OUT+3}], s{sA} offen offset:{nb*32}")
    a.label("L_k3_done")
    a.e("s_endpgm")
    for p in check_hazards(a.lines):
        print("HAZARD k3:", p)
    return a, dict(name="out_kernel", vgpr=176 + 128, accum=176, sgpr=96, grid=256, block=256, lds=131072)


def main():
    ref = open(f"cdna_kernels/{NAME}.s.ref").read().splitlines()
    head = [l for l in ref if l.startswith(";") and "@launch" not in l and "Override" not in l and "grid=ceil" not in l]
    ks = [gen_ln(), gen_k2(), gen_k3()]
    for p in check_hazards(ks[0][0].lines):
        print("HAZARD k1:", p)
    out = list(head)
    for _, m in ks:
        out.append(f"; @launch kernel={m['name']} grid=({m['grid']},1,1) block=({m['block']},1,1) lds={m['lds']}")
    out.append('.amdgcn_target "amdgcn-amd-amdhsa--gfx950"')
    out.append(".text")
    for a, m in ks:
        out.append(f".globl {m['name']}")
        out.append(a.text())
    out.append('.section .rodata,"a"')
    for _, m in ks:
        out.append(".p2align 6")
        out.append(f""".amdhsa_kernel {m['name']}
  .amdhsa_next_free_vgpr {m['vgpr']}
  .amdhsa_next_free_sgpr {m['sgpr']}
  .amdhsa_accum_offset {m['accum']}
  .amdhsa_group_segment_fixed_size 0
  .amdhsa_kernarg_size 96
  .amdhsa_user_sgpr_count 2
  .amdhsa_user_sgpr_kernarg_segment_ptr 1
  .amdhsa_system_sgpr_workgroup_id_x 1
.end_amdhsa_kernel""")
    path = sys.argv[1] if len(sys.argv) > 1 else f"cdna_kernels/{NAME}.s"
    open(path, "w").write("\n".join(out) + "\n")
    print("wrote", path)


if __name__ == "__main__":
    main()
```
